```python
import torch

def _softmax(x, axis=-1):
    return torch.softmax(x, dim=axis)
def _gelu(x):
    return torch.nn.functional.gelu(x, approximate="tanh")
def _silu(x):
    return torch.nn.functional.silu(x)
def _sigmoid(x):
    return torch.sigmoid(x)
def _layernorm(x, axis=-1, eps=1e-5):
    m = x.mean(dim=axis, keepdim=True)
    v = x.var(dim=axis, keepdim=True, unbiased=False)
    return (x - m) / torch.sqrt(v + eps)
def _scatter_add(tgt, idx, src, axis=0):
    return tgt.clone().index_add_(axis, idx, src)
def _segment_sum(src, seg, n):
    out = torch.zeros((n,) + src.shape[1:], dtype=src.dtype)
    return out.index_add_(0, seg, src)
def _pad(x, pw):
    flat = tuple(v for pair in reversed(pw) for v in pair)
    return torch.nn.functional.pad(x, flat)

kernel_name = 'standalone__swiglu_ffn__decode'

def setup_inputs():

    _w = (lambda a: (lambda t: t.to(torch.bfloat16) if t.is_floating_point() else t)(torch.as_tensor(a)))
    B, S, D, F = 1, 1, 1024, 3584
    return {
        "x": _w((lambda *s: torch.randn(*s, dtype=torch.bfloat16) * 0.05)(B, S, D)),
        "w_gate": _w((lambda *s: torch.randn(*s, dtype=torch.bfloat16) * 0.05)(D, F)),
        "w_up": _w((lambda *s: torch.randn(*s, dtype=torch.bfloat16) * 0.05)(D, F)),
        "w_down": _w((lambda *s: torch.randn(*s, dtype=torch.bfloat16) * 0.05)(F, D)),
    }

def reference(x, w_gate, w_up, w_down):
    g = _silu(x @ w_gate)
    u = x @ w_up
    return (g * u) @ w_down
```

```python
import sys
HDR = """; Kernarg layout for this problem (56 bytes, ptrs only, base s[0:1]):
"""
NAME = "standalone__swiglu_ffn__decode_kernel"

def gen(nt=False, stamps=False):
    L = []
    a = L.append
    NT = " nt" if nt else ""
    a(HDR + "; @launch grid=(256,1,1) block=(256,1,1) lds=1024")
    a('.amdgcn_target "amdgcn-amd-amdhsa--gfx950"')
    a(".text")
    a(f".globl {NAME}")
    a(".p2align 8")
    a(f".type {NAME},@function")
    a(f"{NAME}:")
    a("  v_readfirstlane_b32 s3, v0")
    a("  s_cmp_ge_u32 s2, 224")
    a("  s_cbranch_scc1 L_cons")
    a("  s_load_dwordx2 s[8:9], s[0:1], 0")
    a("  s_lshr_b32 s28, s3, 7")
    a("  s_lshl_b32 s28, s28, 3")
    a("  s_add_u32 s28, s28, 8")
    a("  s_load_dwordx2 s[4:5], s[0:1], s28")
    a("  s_load_dwordx2 s[12:13], s[0:1], 24")
    a("  s_load_dwordx2 s[20:21], s[0:1], 40")
    a("  s_load_dwordx2 s[16:17], s[0:1], 48")
    a("  s_mov_b32 s6, 7340032")
    a("  s_mov_b32 s7, 0x20000")
    a("  s_mov_b32 s10, 2048")
    a("  s_mov_b32 s11, 0x20000")
    a("  s_mov_b32 s14, 7340032")
    a("  s_mov_b32 s15, 0x20000")
    a("  s_mov_b32 s18, 917504")
    a("  s_mov_b32 s19, 0x20000")
    a("  s_mov_b32 s22, 256")
    a("  s_mov_b32 s23, 0x20000")
    a("  s_and_b32 s29, s2, 7")
    a("  s_mul_i32 s29, s29, 28")
    a("  s_lshr_b32 s30, s2, 3")
    a("  s_add_u32 s29, s29, s30")
    for i in range(1, 16):
        a(f"  s_mov_b32 s{31+i}, {i*7168}")
    a("  s_movk_i32 s47, 4096")
    a("  s_mov_b32 s48, 0x05040100")
    a("  s_mov_b32 s49, 0x07060302")
    a("  v_and_b32 v2, 126, v0")
    a("  v_lshlrev_b32 v2, 4, v2")
    a("  v_mul_u32_u24 v1, 3584, v2")
    a("  v_and_b32 v3, 1, v0")
    a("  v_lshlrev_b32 v3, 4, v3")
    a("  s_lshl_b32 s30, s29, 5")
    a("  v_add3_u32 v1, v1, v3, s30")
    a("  v_bfe_u32 v5, v0, 4, 2")
    a("  v_and_b32 v6, 15, v0")
    a("  v_lshlrev_b32 v3, 13, v5")
    a("  v_lshl_add_u32 v3, v6, 4, v3")
    a("  s_lshl_b32 s30, s29, 15")
    a("  s_lshl_b32 s31, s3, 3")
    a("  s_add_u32 s30, s30, s31")
    a("  v_add_u32 v3, s30, v3")
    a("  s_waitcnt lgkmcnt(0)")
    a("  buffer_load_dwordx4 v[8:11], v2, s[8:11], 0 offen")
    a("  buffer_load_dwordx4 v[12:15], v2, s[8:11], 0 offen offset:16")
    for i in range(16):
        so = "0" if i == 0 else f"s{31+i}"
        a(f"  buffer_load_dwordx4 v[{16+4*i}:{19+4*i}], v1, s[4:7], {so} offen{NT}")
    for q in range(4):
        for cb in range(2):
            so = "0" if q < 2 else "s47"
            off = (q & 1) * 2048 + cb * 256
            r = 80 + 4 * (2 * q + cb)
            a(f"  buffer_load_dwordx4 v[{r}:{r+3}], v3, s[12:15], {so} offen offset:{off}{NT}")
    for j in range(8):
        a(f"  v_mov_b32 v{112+j}, 0")
    a("  v_lshrrev_b32 v4, 2, v6")
    a("  s_lshr_b32 s31, s3, 3")
    a("  v_add_u32 v4, s31, v4")
    a("  v_mul_u32_u24 v4, 28672, v4")
    a("  v_and_b32 v7, 3, v6")
    a("  v_lshl_add_u32 v4, v7, 5, v4")
    a("  v_lshl_add_u32 v4, v5, 4, v4")
    a("  s_lshl_b32 s31, s29, 7")
    a("  v_add_u32 v4, s31, v4")
    a("  s_mov_b32 s50, 114688")
    a("  v_and_b32 v120, 1, v0")
    a("  v_lshlrev_b32 v120, 4, v120")
    a("  v_mov_b32 v121, 0xffff")
    a("  v_lshlrev_b32 v120, v120, v121")
    a("  v_lshrrev_b32 v121, 1, v6")
    for r in range(4):
        a(f"  v_cmp_eq_u32 vcc, {r}, v121")
        a("  s_nop 1")
        a(f"  v_cndmask_b32 v{124+r}, 0, v120, vcc")
    a("  v_and_b32 v122, 1, v0")
    a("  v_lshlrev_b32 v122, 3, v122")
    a("  v_bfe_u32 v123, v0, 3, 1")
    a("  v_lshl_add_u32 v122, v123, 2, v122")
    a("  v_bfe_u32 v123, v0, 4, 1")
    a("  v_lshl_add_u32 v122, v123, 1, v122")
    a("  v_bfe_u32 v123, v0, 5, 1")
    a("  v_add_u32 v122, v123, v122")
    a("  v_lshlrev_b32 v122, 4, v122")
    a("  s_lshr_b32 s31, s3, 4")
    a("  v_add_u32 v122, s31, v122")
    a("  v_lshl_add_u32 v123, v5, 2, v7")
    a("  v_lshlrev_b32 v123, 4, v123")
    a("  v_and_b32 v7, 31, v0")
    a("  v_lshlrev_b32 v7, 2, v7")
    for p in range(8):
        extra = 1 if p > 3 else 0
        n = 16 - 2 * (p + 1) + 8 + extra
        a(f"  s_waitcnt vmcnt({n})")
        A = 16 + 8 * p
        B = A + 4
        for d in range(4):
            a(f"  v_perm_b32 v120, v{B+d}, v{A+d}, s48")
            a(f"  v_perm_b32 v121, v{B+d}, v{A+d}, s49")
            a(f"  v_dot2c_f32_bf16 v{112+2*d}, v120, v{8+p}")
            a(f"  v_dot2c_f32_bf16 v{113+2*d}, v121, v{8+p}")
        if p == 3:
            a("  buffer_load_dword v5, v7, s[20:23], 0 offen sc1")
    a("  s_nop 2")
    for i in range(4):
        a(f"  v_permlane32_swap_b32 v{112+2*i}, v{113+2*i}")
    for i in range(4):
        a(f"  v_add_f32 v{112+i}, v{112+2*i}, v{113+2*i}")
    a("  s_nop 0")
    a("  v_permlane16_swap_b32 v112, v113")
    a("  v_permlane16_swap_b32 v114, v115")
    a("  v_add_f32 v112, v112, v113")
    a("  v_add_f32 v113, v114, v115")
    a("  s_nop 0")
    a("  v_add_f32_dpp v114, v112, v112 row_ror:8 row_mask:0xf bank_mask:0x3")
    a("  s_nop 1")
    a("  v_add_f32_dpp v114, v113, v113 row_ror:8 row_mask:0xf bank_mask:0xc")
    a("  s_nop 1")
    a("  v_add_f32_dpp v114, v114, v114 row_shl:4 row_mask:0xf bank_mask:0xf bound_ctrl:0")
    a("  s_mov_b32 s52, 0x03030303")
    a("  s_mov_b32 s53, 0x03030303")
    a("  v_add_f32_dpp v114, v114, v114 quad_perm:[2,3,0,1] row_mask:0xf bank_mask:0xf")
    a("  s_mov_b64 exec, s[52:53]")
    a("  ds_write_b32 v122, v114")
    a("  s_mov_b64 exec, -1")
    a("  s_waitcnt lgkmcnt(0)")
    a("  s_barrier")
    a("  ds_read_b128 v[16:19], v123")
    a("  s_waitcnt lgkmcnt(0)")
    a("  v_add_f32 v16, v16, v17")
    a("  v_add_f32 v18, v18, v19")
    a("  v_cvt_pk_bf16_f32 v16, v16, v18")
    a("  v_lshlrev_b32 v17, 16, v16")
    a("  v_and_b32 v18, 0xffff0000, v16")
    a("  v_mul_f32 v19, 0xbfb8aa3b, v17")
    a("  v_exp_f32 v19, v19")
    a("  s_nop 0")
    a("  v_add_f32 v19, 1.0, v19")
    a("  v_rcp_f32 v19, v19")
    a("  s_nop 0")
    a("  v_mul_f32 v17, v17, v19")
    a("  v_cvt_pk_bf16_f32 v17, v17, v17")
    a("  v_and_b32 v17, 0xffff0000, v17")
    a("  v_mul_f32 v17, v17, v18")
    a("  v_cvt_pk_bf16_f32 v17, v17, v17")
    a("  s_nop 1")
    for q in range(4):
        for r in range(4):
            a(f"  v_and_b32_dpp v{20+4*q+r}, v17, v{124+r} quad_perm:[{q},{q},{q},{q}] row_mask:0xf bank_mask:0xf")
    a("  s_waitcnt vmcnt(1)")
    for q in range(4):
        for cb in range(2):
            r = 80 + 4 * (2 * q + cb)
            d = 40 + 4 * cb
            c = "0" if q == 0 else f"v[{d}:{d+3}]"
            a(f"  v_mfma_f32_16x16x32_bf16 v[{d}:{d+3}], v[{20+4*q}:{23+4*q}], v[{r}:{r+3}], {c}")
    a("  s_mov_b32 s51, 0")
    a("L_flag:")
    a("  s_waitcnt vmcnt(0)")
    a("  v_cmp_eq_u32 vcc, 0, v5")
    a("  s_cbranch_vccz L_pub")
    a("  buffer_load_dword v5, v7, s[20:23], 0 offen sc1")
    a("  s_add_u32 s51, s51, 1")
    a("  s_cmp_lt_u32 s51, 0x100000")
    a("  s_cbranch_scc1 L_flag")
    a("L_pub:")
    a("  s_mov_b32 exec_hi, 0")
    a("  s_nop 4")
    a("  buffer_store_dwordx4 v[40:43], v4, s[16:19], 0 offen sc1")
    a("  buffer_store_dwordx4 v[44:47], v4, s[16:19], s50 offen sc1")
    a("  s_endpgm")
    a("L_cons:")
    a("  s_cmp_ge_u32 s2, 256")
    a("  s_cbranch_scc1 L_end")
    a("  s_load_dwordx2 s[24:25], s[0:1], 32")
    a("  s_load_dwordx2 s[20:21], s[0:1], 40")
    a("  s_load_dwordx2 s[16:17], s[0:1], 48")
    a("  s_mov_b32 s18, 917504")
    a("  s_mov_b32 s19, 0x20000")
    a("  s_mov_b32 s22, 256")
    a("  s_mov_b32 s23, 0x20000")
    a("  s_mov_b32 s26, 2048")
    a("  s_mov_b32 s27, 0x20000")
    a("  s_sub_u32 s29, s2, 224")
    a("  s_mul_i32 s32, s29, 28672")
    for k in range(1, 7):
        a(f"  s_add_u32 s{32+k}, s32, {4096*k}")
    a("  v_lshlrev_b32 v1, 4, v0")
    for j in range(4):
        a(f"  v_mov_b32 v{4+j}, -1")
    a("  s_waitcnt lgkmcnt(0)")
    for k in range(7):
        a(f"  buffer_store_dwordx4 v[4:7], v1, s[16:19], s{32+k} offen sc1")
    a("  s_lshl_b32 s30, s29, 2")
    a("  v_mov_b32 v2, s30")
    a("  v_mov_b32 v3, 1")
    a("  v_and_b32 v40, 7, v0")
    a("  v_lshlrev_b32 v40, 2, v40")
    a("  v_bfe_u32 v41, v0, 4, 1")
    a("  v_lshl_add_u32 v40, v41, 1, v40")
    a("  v_bfe_u32 v41, v0, 5, 1")
    a("  v_add_u32 v40, v41, v40")
    a("  v_lshlrev_b32 v40, 4, v40")
    a("  s_lshr_b32 s31, s3, 4")
    a("  v_add_u32 v40, s31, v40")
    a("  v_lshlrev_b32 v41, 5, v0")
    a("  s_lshl_b32 s30, s29, 6")
    a("  v_lshlrev_b32 v42, 2, v0")
    a("  s_waitcnt vmcnt(0)")
    a("  s_barrier")
    a("  s_cmp_lg_u32 s3, 0")
    a("  s_cbranch_scc1 L_noflag")
    a("  s_mov_b64 exec, 1")
    a("  buffer_store_dword v3, v2, s[20:23], 0 offen sc1")
    a("  s_mov_b64 exec, -1")
    a("L_noflag:")
    a("  s_mov_b32 s51, 0")
    a("L_poll:")
    for k in range(7):
        a(f"  buffer_load_dwordx4 v[{8+4*k}:{11+4*k}], v1, s[16:19], s{32+k} offen sc1")
    a("  s_add_u32 s51, s51, 1")
    a("  s_waitcnt vmcnt(5)")
    for j in range(4):
        a(f"  v_add_f32 v{4+j}, v{8+j}, v{12+j}")
    for k in range(2, 7):
        a(f"  s_waitcnt vmcnt({6-k})")
        for j in range(4):
            a(f"  v_add_f32 v{4+j}, v{4+j}, v{8+4*k+j}")
    a("  v_cmp_u_f32 vcc, v4, v5")
    a("  v_cmp_u_f32 s[52:53], v6, v7")
    a("  s_or_b64 vcc, vcc, s[52:53]")
    a("  s_cbranch_scc0 L_ready")
    a("  v_max3_u32 v36, v8, v9, v10")
    for i in range(11, 35, 2):
        a(f"  v_max3_u32 v36, v36, v{i}, v{i+1}")
    a("  v_max_u32 v36, v36, v35")
    a("  v_cmp_eq_u32 vcc, -1, v36")
    a("  s_cmp_lt_u32 s51, 0x100000")
    a("  s_cbranch_scc0 L_ready")
    a("  s_cbranch_vccnz L_poll")
    a("L_ready:")
    a("  v_permlane32_swap_b32 v4, v5")
    a("  v_permlane32_swap_b32 v6, v7")
    a("  v_add_f32 v4, v4, v5")
    a("  v_add_f32 v5, v6, v7")
    a("  s_nop 1")
    a("  v_permlane16_swap_b32 v4, v5")
    a("  v_add_f32 v4, v4, v5")
    a("  s_mov_b32 s52, 0x00ff00ff")
    a("  s_mov_b32 s53, 0x00ff00ff")
    a("  v_add_f32_dpp v4, v4, v4 row_ror:8 row_mask:0xf bank_mask:0xf")
    a("  s_mov_b64 exec, s[52:53]")
    a("  ds_write_b32 v40, v4")
    a("  s_waitcnt lgkmcnt(0)")
    a("  s_barrier")
    a("  s_cmp_lg_u32 s3, 0")
    a("  s_cbranch_scc1 L_end")
    a("  s_mov_b64 exec, 0xffff")
    a("  ds_read_b128 v[8:11], v41")
    a("  ds_read_b128 v[12:15], v41 offset:16")
    a("  s_waitcnt lgkmcnt(0)")
    a("  v_add_f32 v8, v8, v9")
    a("  v_add_f32 v10, v10, v11")
    a("  v_add_f32 v12, v12, v13")
    a("  v_add_f32 v14, v14, v15")
    a("  v_add_f32 v8, v8, v10")
    a("  v_add_f32 v12, v12, v14")
    a("  v_cvt_pk_bf16_f32 v8, v8, v12")
    a("  buffer_store_dword v8, v42, s[24:27], s30 offen")
    a("L_end:")
    a("  s_endpgm")
    a('.section .rodata,"a"')
    a(".p2align 6")
    a(f".amdhsa_kernel {NAME}")
    a("  .amdhsa_next_free_vgpr 128")
    a("  .amdhsa_next_free_sgpr 64")
    a("  .amdhsa_accum_offset 128")
    a("  .amdhsa_group_segment_fixed_size 0")
    a("  .amdhsa_kernarg_size 56")
    a("  .amdhsa_user_sgpr_count 2")
    a("  .amdhsa_user_sgpr_kernarg_segment_ptr 1")
    a("  .amdhsa_system_sgpr_workgroup_id_x 1")
    a("  .amdhsa_float_denorm_mode_32 3")
    a(".end_amdhsa_kernel")
    return "\n".join(L) + "\n"

if __name__ == "__main__":
    open("v1.s", "w").write(gen())
    open("v1nt.s", "w").write(gen(nt=True))
```
